```python
import torch

def _softmax(x, axis=-1):
    return torch.softmax(x, dim=axis)
def _gelu(x):
    return torch.nn.functional.gelu(x, approximate="tanh")
def _silu(x):
    return torch.nn.functional.silu(x)
def _sigmoid(x):
    return torch.sigmoid(x)
def _layernorm(x, axis=-1, eps=1e-5):
    m = x.mean(dim=axis, keepdim=True)
    v = x.var(dim=axis, keepdim=True, unbiased=False)
    return (x - m) / torch.sqrt(v + eps)
def _scatter_add(tgt, idx, src, axis=0):
    return tgt.clone().index_add_(axis, idx, src)
def _segment_sum(src, seg, n):
    out = torch.zeros((n,) + src.shape[1:], dtype=src.dtype)
    return out.index_add_(0, seg, src)
def _pad(x, pw):
    flat = tuple(v for pair in reversed(pw) for v in pair)
    return torch.nn.functional.pad(x, flat)

kernel_name = 'recurrent_scan__sliding_local_dilated__dense_activation_squared_relu__prompt'

def setup_inputs():

    _w = (lambda a: (lambda t: t.to(torch.bfloat16) if t.is_floating_point() else t)(torch.as_tensor(a)))
    def _A_setup():
        B, S, D = 1, 2048, 640
        return {
            "x": _w((lambda *s: torch.randn(*s, dtype=torch.bfloat16) * 0.05)(B, S, D)),
            "wqkv": _w((lambda *s: torch.randn(*s, dtype=torch.bfloat16) * 0.05)(D, 3 * D)),
            "wo": _w((lambda *s: torch.randn(*s, dtype=torch.bfloat16) * 0.05)(D, D)),
        }
    _A_in = _A_setup()

    def _B_setup():
        B, S, D, F = 1, 2048, 640, 1536
        return {
            "x": _w((lambda *s: torch.randn(*s, dtype=torch.bfloat16) * 0.05)(B, S, D)),
            "w1": _w((lambda *s: torch.randn(*s, dtype=torch.bfloat16) * 0.05)(D, F)),
            "b1": _w((lambda *s: torch.randn(*s, dtype=torch.bfloat16) * 0.4)(F)),
            "w2": _w((lambda *s: torch.randn(*s, dtype=torch.bfloat16) * 0.05)(F, D)),
            "b2": _w((lambda *s: torch.randn(*s, dtype=torch.bfloat16) * 1.6)(D)),
        }
    _B_in = _B_setup()

    return {
        "A_x": _A_in["x"],
        "A_wqkv": _A_in["wqkv"],
        "A_wo": _A_in["wo"],
        "B_x": _B_in["x"],
        "B_w1": _B_in["w1"],
        "B_b1": _B_in["b1"],
        "B_w2": _B_in["w2"],
        "B_b2": _B_in["b2"],
    }

def reference(A_x, A_wqkv, A_wo, B_x, B_w1, B_b1, B_w2, B_b2):
    def _A_ref(x, wqkv, wo):
        B, S, D = x.shape
        H = 32; Dh = D // H
        W, dil = 8, 2
        qkv = (lambda x, *d: x.permute(*d))((x @ wqkv).reshape(B, S, 3, H, Dh), 2, 0, 3, 1, 4)
        q, k, v = qkv[0], qkv[1], qkv[2]
        scale = Dh ** -0.5
        pos = torch.arange(S)
        off = torch.arange(W) * dil
        idx = pos[:, None] - off[None, :]
        mask = idx >= 0
        idx_c = torch.where(mask, idx, 0).reshape(-1)
        kg = k[:, :, idx_c, :].reshape(B, H, S, W, Dh)
        vg = v[:, :, idx_c, :].reshape(B, H, S, W, Dh)
        logits = torch.einsum("bhsd,bhswd->bhsw", q, kg) * scale
        logits = torch.where(mask[None, None, :, :], logits, -1e9)
        attn = _softmax(logits, axis=-1)
        o = torch.einsum("bhsw,bhswd->bhsd", attn, vg)
        return (lambda x, *d: x.permute(*d))(o, 0, 2, 1, 3).reshape(B, S, D) @ wo

    def _B_ref(x, w1, b1, w2, b2):
        h = torch.einsum("bsd,df->bsf", x, w1) + b1
        zero = torch.zeros_like(h)
        r = torch.where(h > zero, h, zero)
        h = r * r
        out = torch.einsum("bsf,fd->bsd", h, w2) + b2
        return out

    x = A_x
    xn = _layernorm(x, axis=-1)
    s = _A_ref(xn, A_wqkv, A_wo)
    g = _silu(_B_ref(xn, B_w1, B_b1, B_w2, B_b2))
    return x + s * g
```

```python
import re

REG_RE = re.compile(r"^(-|\|)?(abs\()?([vsa])(\d+)\)?\|?$")
RANGE_RE = re.compile(r"^(-|\|)?(abs\()?([vsa])\[(\d+):(\d+)\]\)?\|?$")

TRANS = ("v_exp_f32", "v_log_f32", "v_rcp_f32", "v_rsq_f32", "v_sqrt_f32", "v_sin_f32", "v_cos_f32")


def parse_regs(op):
    op = op.strip()
    m = REG_RE.match(op)
    if m:
        return [(m.group(3), int(m.group(4)))]
    m = RANGE_RE.match(op)
    if m:
        return [(m.group(3), i) for i in range(int(m.group(4)), int(m.group(5)) + 1)]
    if op == "vcc":
        return [("s", 106), ("s", 107)]
    if op == "vcc_lo":
        return [("s", 106)]
    if op == "vcc_hi":
        return [("s", 107)]
    if op == "exec":
        return [("exec", 0)]
    if op == "m0":
        return [("m0", 0)]
    return []


class Inst:
    __slots__ = ("text", "mn", "ops", "mods", "wr", "rd", "cls", "srcc", "states", "isdpp", "lds")

    def __init__(self, text):
        self.text = text
        t = text.split(";")[0].strip()
        parts = t.split(None, 1)
        self.mn = parts[0] if parts else ""
        rest = parts[1] if len(parts) > 1 else ""
        ops = []
        cur = ""
        depth = 0
        for ch in rest:
            if ch in "[(":
                depth += 1
            if ch in "])":
                depth -= 1
            if ch == "," and depth == 0:
                ops.append(cur.strip())
                cur = ""
            else:
                cur += ch
        if cur.strip():
            ops.append(cur.strip())
        mods = ""
        if ops:
            sp = ops[-1].split(None, 1)
            ops[-1] = sp[0]
            if len(sp) > 1:
                mods = sp[1]
        self.ops = ops
        self.mods = mods
        self.wr = []
        self.rd = []
        self.srcc = []
        self.states = 1
        self.isdpp = False
        self.lds = False
        self.classify()

    def classify(self):
        mn = self.mn
        ops = self.ops
        R = [parse_regs(o) for o in ops]
        flat = lambda l: [x for y in l for x in y]
        if mn.endswith(":") or mn.startswith(".") or mn == "":
            self.cls = "label"
            self.states = 0
            return
        if mn == "s_nop":
            self.cls = "nop"
            self.states = int(ops[0], 0) + 1
            return
        if mn.startswith("v_mfma"):
            self.cls = "mfma"
            self.wr = R[0]
            self.rd = R[1] + R[2] + R[3]
            self.srcc = R[3]
            return
        if mn.startswith("v_"):
            base = mn.replace("_e32", "").replace("_e64", "").replace("_dpp", "")
            self.cls = "trans" if base in TRANS else "valu"
            self.isdpp = "_dpp" in mn or "quad_perm" in self.mods or "row_" in self.mods
            if base.startswith("v_permlane") and "swap" in base:
                self.cls = "permlane"
                self.wr = R[0] + R[1]
                self.rd = R[0] + R[1]
            elif base.startswith("v_cmp"):
                self.wr = R[0]
                self.rd = flat(R[1:])
            elif base in ("v_add_co_u32", "v_sub_co_u32", "v_subrev_co_u32"):
                self.wr = R[0] + R[1]
                self.rd = flat(R[2:])
            elif base in ("v_addc_co_u32", "v_subb_co_u32"):
                self.wr = R[0] + R[1]
                self.rd = flat(R[2:])
            elif base in ("v_fmac_f32", "v_dot2c_f32_bf16"):
                self.wr = R[0]
                self.rd = flat(R)
            elif base in ("v_readfirstlane_b32", "v_readlane_b32"):
                self.cls = "readlane"
                self.wr = R[0]
                self.rd = flat(R[1:])
            else:
                self.wr = R[0]
                self.rd = flat(R[1:])
                if self.isdpp:
                    self.rd = self.rd + R[0]
            return
        if mn.startswith("ds_"):
            self.cls = "ds"
            if mn.startswith("ds_read") or mn.startswith("ds_bpermute") or mn.startswith("ds_swizzle") or mn.startswith("ds_permute"):
                self.wr = R[0]
                self.rd = flat(R[1:])
            else:
                self.rd = flat(R)
            return
        if mn.startswith("buffer_") or mn.startswith("global_"):
            self.cls = "vmem"
            islds = (" lds" in (" " + self.mods)) or "load_lds" in mn
            self.lds = islds
            if "load" in mn and not islds:
                self.wr = R[0]
                self.rd = flat(R[1:])
            else:
                self.rd = flat(R)
            if islds:
                self.rd = self.rd + [("m0", 0)]
            return
        if mn.startswith("s_"):
            self.cls = "salu"
            if mn.startswith("s_cmp") or mn.startswith("s_bitcmp") or mn.startswith("s_cbranch") or mn in (
                    "s_branch", "s_barrier", "s_waitcnt", "s_endpgm", "s_setprio", "s_sleep"):
                self.rd = flat(R)
            elif "saveexec" in mn:
                self.wr = R[0] + [("exec", 0)]
                self.rd = flat(R[1:]) + [("exec", 0)]
            else:
                self.wr = R[0] if R else []
                self.rd = flat(R[1:])
            return
        raise ValueError("unknown instruction: " + self.text)


def mfma_passes(mn):
    if "16x16x32" in mn or "16x16x16" in mn:
        return 4
    if "32x32x16" in mn or "32x32x8" in mn:
        return 8
    raise ValueError(mn)


def need_states(p, c):
    n = 0
    pw = set(p.wr)
    valu_like = ("valu", "trans", "permlane", "readlane")
    if p.cls in valu_like:
        vw = {r for r in pw if r[0] in "va"}
        sw = {r for r in pw if r[0] == "s"}
        crd = set(c.rd)
        if c.cls == "mfma" and vw & crd:
            n = max(n, 2)
        if c.cls == "readlane" and vw & crd:
            n = max(n, 1)
        if c.cls == "permlane" and vw & crd:
            n = max(n, 2)
        if c.cls in valu_like and c.isdpp and vw & crd:
            n = max(n, 2)
        if p.cls == "trans" and c.cls in ("valu", "permlane", "readlane") and vw & crd:
            n = max(n, 1)
        if sw & crd:
            if c.cls in ("valu", "trans", "permlane"):
                n = max(n, 2)
            if c.cls == "readlane":
                n = max(n, 4)
            if c.cls == "vmem":
                n = max(n, 5)
            if c.cls == "salu":
                n = max(n, 1)
        if p.mn.startswith("v_dot2"):
            if c.cls in valu_like + ("mfma", "ds", "vmem"):
                if c.mn == p.mn:
                    ab = set(parse_regs(c.ops[1]) + parse_regs(c.ops[2]))
                    if vw & ab:
                        n = max(n, 3)
                elif vw & (crd | set(c.wr)):
                    n = max(n, 3)
    if p.cls == "mfma":
        ps = mfma_passes(p.mn)
        full = {4: 8, 8: 12}[ps]
        part = {4: 6, 8: 10}[ps]
        war = {4: 3, 8: 7}[ps]
        if c.cls == "mfma":
            ab = set(parse_regs(c.ops[1]) + parse_regs(c.ops[2]))
            if pw & ab:
                n = max(n, full)
            cc = set(c.srcc)
            if pw & cc:
                if not (c.srcc == p.wr and c.mn == p.mn):
                    n = max(n, part)
            elif pw & set(c.wr):
                n = max(n, part)
        elif c.cls in valu_like + ("ds", "vmem"):
            if pw & (set(c.rd) | set(c.wr)):
                n = max(n, full)
            if c.cls in valu_like and set(p.srcc) & set(c.wr):
                n = max(n, war)
    if p.cls == "salu" and ("m0", 0) in pw and c.cls == "vmem" and c.lds:
        n = max(n, 1)
    if p.cls == "vmem" and "store" in p.mn and ("x4" in p.mn or "x3" in p.mn):
        data = set(parse_regs(p.ops[0] if p.mn.startswith("buffer") else p.ops[1]))
        if data & set(c.wr):
            n = max(n, 2 if c.cls in valu_like else 1)
    return n


class Asm:
    def __init__(self):
        self.lines = []
        self._lab = 0

    def __call__(self, text):
        for ln in text.strip("\n").split("\n"):
            ln = ln.strip()
            if ln:
                self.lines.append(ln)

    def label(self, name):
        self.lines.append(name + ":")

    def newlabel(self, base="L"):
        self._lab += 1
        return "%s_%d" % (base, self._lab)

    def comment(self, text):
        self.lines.append("; " + text)

    def finish(self):
        out = []
        window = []
        for ln in self.lines:
            if ln.startswith(";"):
                out.append("    " + ln)
                continue
            ins = Inst(ln)
            if ins.cls == "label":
                out.append(ln)
                continue
            need = 0
            dist = 0
            for p in reversed(window):
                ns = need_states(p, ins)
                if ns > dist:
                    need = max(need, ns - dist)
                dist += p.states
                if dist > 24:
                    break
            while need > 0:
                k = min(need, 16)
                nop = Inst("s_nop %d" % (k - 1))
                out.append("    s_nop %d" % (k - 1))
                window.append(nop)
                need -= k
            out.append("    " + ln)
            window.append(ins)
            if len(window) > 40:
                window = window[-40:]
        return "\n".join(out) + "\n"


class Regs:
    def __init__(self, kind, start, limit):
        self.kind = kind
        self.next = start
        self.limit = limit
        self.hi = start

    def alloc(self, n=1, align=1):
        a = (self.next + align - 1) // align * align
        self.next = a + n
        assert self.next <= self.limit, "out of %s regs (%d)" % (self.kind, self.next)
        self.hi = max(self.hi, self.next)
        return a


def v(n, cnt=1):
    return "v%d" % n if cnt == 1 else "v[%d:%d]" % (n, n + cnt - 1)


def s(n, cnt=1):
    return "s%d" % n if cnt == 1 else "s[%d:%d]" % (n, n + cnt - 1)
```

```python
import sys
import os
sys.path.insert(0, os.path.dirname(os.path.abspath(__file__)))
from asmlib import Asm, Regs, v, s

NAME = "recurrent_scan__sliding_local_dilated__dense_activation_squared_relu__prompt"
K1 = "k1_lnqkvffn_kernel"
K2 = "k2_proj_kernel"

S_, D_, F_ = 2048, 640, 1536
X_BYTES = S_ * D_ * 2
WQKV_BYTES = D_ * 3 * D_ * 2
WO_BYTES = D_ * D_ * 2
W1_BYTES = D_ * F_ * 2
W2_BYTES = F_ * D_ * 2
A2_BYTES = 128 * 68 * 1024
ONES = 0x3F803F80
NEG_INF = 0xFF800000

STAMPS = os.environ.get("STAMPS", "0") == "1"
STAMP_BASE = 16 << 20


class LdsQ:
    def __init__(self, a):
        self.a = a
        self.q = []

    def issue(self, text, tag):
        self.a(text)
        self.q.append(tag)
        assert len(self.q) <= 15, self.q

    def wait(self, tag):
        idx = [i for i, t in enumerate(self.q) if t == tag]
        if not idx:
            return
        last = idx[-1]
        n = len(self.q) - 1 - last
        assert n <= 15, n
        self.a("s_waitcnt lgkmcnt(%d)" % n)
        self.q = self.q[last + 1:]

    def drain(self):
        self.a("s_waitcnt lgkmcnt(0)")
        self.q = []


def srd(a, d, lo, hi, nbytes):
    a("s_mov_b32 s%d, s%d" % (d, lo))
    a("s_and_b32 s%d, s%d, 0xffff" % (d + 1, hi))
    a("s_mov_b32 s%d, 0x%x" % (d + 2, nbytes))
    a("s_mov_b32 s%d, 0x20000" % (d + 3))


def stamp(a, idx, kern, vt, srdws, wave_s):
    if not STAMPS:
        return
    a("s_memrealtime s[90:91]")
    a("s_lshl_b32 s92, s2, 3")
    a("s_add_u32 s92, s92, s%d" % wave_s)
    a("s_lshl_b32 s92, s92, 6")
    a("s_add_u32 s92, s92, 0x%x" % (STAMP_BASE + kern * 256 * 8 * 64 + idx * 4))
    a("s_waitcnt lgkmcnt(0)")
    a("v_mov_b32 v%d, s90" % vt)
    a("v_mov_b32 v%d, s92" % (vt + 1))
    a("s_mov_b64 s[94:95], exec")
    a("s_mov_b64 exec, 1")
    a("buffer_store_dword v%d, v%d, s[%d:%d], 0 offen" % (vt, vt + 1, srdws, srdws + 3))
    a("s_mov_b64 exec, s[94:95]")


SRD_X, SRD_W, SRD_WS, SRD_B1 = 8, 12, 24, 28
sWAVE, sM, sC, sROT, sW = 32, 33, 34, 35, 36
A_SLOT = 16384 + 30720
B_SLOT = 20480 + 24576
STAT_OFF = 3 * A_SLOT
RSTD_OFF = STAT_OFF
MR_OFF = STAT_OFF + 640
CS_OFF = STAT_OFF + 1280
LDS1 = 163840


def loader_stats_final(a, nblk, vsum, vsq, vt, lw_s):
    for i in range(nblk):
        for r in (vsum + i, vsq + i):
            a("v_add_f32_dpp v%d, v%d, v%d quad_perm:[1,0,3,2] row_mask:0xf bank_mask:0xf" % (r, r, r))
    for i in range(nblk):
        for r in (vsum + i, vsq + i):
            a("v_add_f32_dpp v%d, v%d, v%d quad_perm:[2,3,0,1] row_mask:0xf bank_mask:0xf" % (r, r, r))
    for i in range(nblk):
        for r in (vsum + i, vsq + i):
            a("v_add_f32_dpp v%d, v%d, v%d row_half_mirror row_mask:0xf bank_mask:0xf" % (r, r, r))
    a("v_lshrrev_b32 v%d, 3, v0" % vt)
    a("v_lshlrev_b32 v%d, 2, v%d" % (vt, vt))
    a("s_lshl_b32 s50, s%d, 5" % lw_s)
    a("v_add_u32 v%d, s50, v%d" % (vt, vt))
    a("v_add_u32 v%d, 0x%x, v%d" % (vt, STAT_OFF, vt))
    inv = 0x3ACCCCCD
    a("s_mov_b32 s51, 0x%x" % inv)
    for i in range(nblk):
        a("v_mul_f32 v%d, s51, v%d" % (vsum + i, vsum + i))
        a("v_mul_f32 v%d, s51, v%d" % (vsq + i, vsq + i))
        a("v_fma_f32 v%d, -v%d, v%d, v%d" % (vsq + i, vsum + i, vsum + i, vsq + i))
        a("v_max_f32 v%d, 0, v%d" % (vsq + i, vsq + i))
        a("v_add_f32 v%d, 0x3727c5ac, v%d" % (vsq + i, vsq + i))
        a("v_rsq_f32 v%d, v%d" % (vsq + i, vsq + i))
        a("v_mul_f32 v%d, v%d, v%d" % (vsum + i, vsum + i, vsq + i))
        a("v_sub_f32 v%d, 0, v%d" % (vsum + i, vsum + i))
    for i in range(nblk):
        a("ds_write_b32 v%d, v%d offset:%d" % (vt, vsq + i, i * 128))
        a("ds_write_b32 v%d, v%d offset:%d" % (vt, vsum + i, 640 + i * 128))
    a("s_waitcnt lgkmcnt(0)")


def gen_loader(a, typ):
    isA = typ == "A"
    nx = 4 if isA else 5
    nw = 8 if isA else 6
    nper = nx + nw
    SLOT = A_SLOT if isA else B_SLOT
    WOFF = 16384 if isA else 20480
    WROW = 3840 if isA else 3072
    R = Regs("v", 1, 128)
    vX = R.alloc(nx)
    vW = R.alloc(1 if isA else 3)
    vt = R.alloc(4)
    vlin = R.alloc(1)
    vsum = R.alloc(nx)
    vsq = R.alloc(nx)
    vd = R.alloc(4 * nx, 4)
    vones = R.alloc(1)
    lw = sW
    a.comment("---- loader %s ----" % typ)
    a("v_lshrrev_b32 v%d, 3, v0" % vt)
    a("s_lshl_b32 s50, s%d, 3" % lw)
    a("v_add_u32 v%d, s50, v%d" % (vt, vt))
    a("v_lshrrev_b32 v%d, 1, v%d" % (vt + 1, vt))
    a("v_xor_b32 v%d, v%d, v0" % (vt + 1, vt + 1))
    a("v_and_b32 v%d, 7, v%d" % (vt + 1, vt + 1))
    a("v_lshlrev_b32 v%d, 4, v%d" % (vt + 1, vt + 1))
    if isA:
        a("s_mul_i32 s50, s%d, 112" % sM)
        a("s_sub_u32 s50, s50, 16")
    else:
        a("s_mul_i32 s50, s%d, 160" % sM)
    a("v_add_u32 v%d, s50, v%d" % (vt, vt))
    a("s_movk_i32 s51, 0x500")
    a("s_movk_i32 s52, 0x7ff")
    for i in range(nx):
        a("v_add_u32 v%d, %d, v%d" % (vt + 2, 32 * i, vt))
        a("v_max_i32 v%d, 0, v%d" % (vt + 2, vt + 2))
        a("v_min_i32 v%d, s52, v%d" % (vt + 2, vt + 2))
        a("v_mad_u32_u24 v%d, v%d, s51, v%d" % (vX + i, vt + 2, vt + 1))
    if isA:
        a("v_cmp_lt_u32 vcc, 29, v0")
        a("v_cndmask_b32 v%d, 0, 1, vcc" % vt) if False else None
        a("v_mov_b32 v%d, 0" % vt)
        a("v_mov_b32 v%d, 1" % (vt + 1))
        a("v_cndmask_b32 v%d, v%d, v%d, vcc" % (vt, vt, vt + 1))
        a("v_mul_u32_u24 v%d, 30, v%d" % (vt + 1, vt))
        a("v_sub_u32 v%d, v0, v%d" % (vt + 1, vt + 1))
        a("v_mul_u32_u24 v%d, 26, v%d" % (vt + 2, vt + 1))
        a("v_lshrrev_b32 v%d, 8, v%d" % (vt + 2, vt + 2))
        a("v_mul_u32_u24 v%d, 10, v%d" % (vt + 3, vt + 2))
        a("v_sub_u32 v%d, v%d, v%d" % (vt + 3, vt + 1, vt + 3))
        a("v_mul_u32_u24 v%d, 0x%x, v%d" % (vW, 3840, vt))
        a("v_mul_u32_u24 v%d, 0x%x, v%d" % (vt + 2, 1280, vt + 2))
        a("v_add_u32 v%d, v%d, v%d" % (vW, vW, vt + 2))
        a("v_lshlrev_b32 v%d, 4, v%d" % (vt + 3, vt + 3))
        a("v_add_u32 v%d, v%d, v%d" % (vW, vW, vt + 3))
        a("s_mul_i32 s50, s%d, 160" % sC)
        a("s_mul_i32 s51, s%d, %d" % (lw, 16 * 3840))
        a("s_add_u32 s50, s50, s51")
        a("v_add_u32 v%d, s50, v%d" % (vW, vW))
    else:
        a("s_mul_i32 s50, s%d, 384" % sC)
        a("s_mul_i32 s51, s%d, %d" % (lw, 16 * 3072))
        a("s_add_u32 s50, s50, s51")
        for j in range(3):
            a("v_add_u32 v%d, %d, v0" % (vt, 64 * j))
            a("v_mul_u32_u24 v%d, 0xab, v%d" % (vt + 1, vt))
            a("v_lshrrev_b32 v%d, 12, v%d" % (vt + 1, vt + 1))
            a("v_mul_u32_u24 v%d, 24, v%d" % (vt + 2, vt + 1))
            a("v_sub_u32 v%d, v%d, v%d" % (vt + 2, vt, vt + 2))
            a("v_and_b32 v%d, 6, v%d" % (vt + 3, vt + 1))
            a("v_xor_b32 v%d, v%d, v%d" % (vt + 2, vt + 2, vt + 3))
            a("v_lshlrev_b32 v%d, 4, v%d" % (vt + 2, vt + 2))
            a("v_lshrrev_b32 v%d, 2, v%d" % (vt + 3, vt + 1))
            a("v_lshlrev_b32 v%d, 3, v%d" % (vt + 3, vt + 3))
            a("v_and_b32 v%d, 3, v%d" % (vt + 1, vt + 1))
            a("v_add_u32 v%d, v%d, v%d" % (vt + 1, vt + 1, vt + 3))
            a("v_mul_u32_u24 v%d, 0x%x, v%d" % (vt + 1, 3072, vt + 1))
            a("v_add_u32 v%d, v%d, v%d" % (vt + 1, vt + 1, vt + 2))
            a("v_add_u32 v%d, s50, v%d" % (vW + j, vt + 1))
    a("v_lshlrev_b32 v%d, 4, v0" % vlin)
    a("s_lshl_b32 s50, s%d, 10" % lw)
    a("v_add_u32 v%d, s50, v%d" % (vlin, vlin))
    a("v_mov_b32 v%d, 0x%x" % (vones, ONES))
    for i in range(nx):
        a("v_mov_b32 v%d, 0" % (vsum + i))
        a("v_mov_b32 v%d, 0" % (vsq + i))
    a("s_mov_b32 s60, s%d" % sROT)
    a("s_mov_b32 s61, 0")
    a("s_mov_b32 s62, 0")
    a("s_lshl_b32 s63, s%d, 10" % lw)
    if isA:
        a("s_mul_i32 s64, s%d, %d" % (lw, 8 * 960))
    else:
        a("s_mul_i32 s64, s%d, %d" % (lw, 6 * 1024))
    a("s_add_u32 s64, s64, %d" % WOFF)

    def issue_stage():
        a("s_lshl_b32 s65, s60, 7")
        a("s_mul_i32 s66, s60, %d" % (64 * WROW))
        a("s_add_u32 s67, s61, s63")
        for i in range(nx):
            a("s_add_u32 m0, s67, %d" % (4096 * i))
            a("buffer_load_dwordx4 v%d, s[%d:%d], s65 offen lds" % (vX + i, SRD_X, SRD_X + 3))
        a("s_add_u32 s67, s61, s64")
        if isA:
            a("s_mov_b64 exec, 0x0fffffffffffffff") if False else None
            a("s_mov_b32 exec_hi, 0x0fffffff")
            for i in range(8):
                kk = 8 * ((i >> 1) & 1) + 4 * ((i >> 2) & 1) + 2 * (i & 1)
                a("s_add_u32 s68, s66, %d" % (kk * WROW))
                a("s_add_u32 m0, s67, %d" % (960 * i))
                a("buffer_load_dwordx4 v%d, s[%d:%d], s68 offen lds" % (vW, SRD_W, SRD_W + 3))
            a("s_mov_b32 exec_hi, -1")
        else:
            for e in range(2):
                a("s_add_u32 s68, s66, %d" % (4 * e * WROW))
                for j in range(3):
                    a("s_add_u32 m0, s67, %d" % (1024 * (3 * e + j)))
                    a("buffer_load_dwordx4 v%d, s[%d:%d], s68 offen lds" % (vW + j, SRD_W, SRD_W + 3))
        a("s_add_u32 s60, s60, 1")
        a("s_cmp_eq_u32 s60, 10")
        a("s_cselect_b32 s60, 0, s60")
        a("s_add_u32 s61, s61, %d" % SLOT)
        a("s_cmp_eq_u32 s61, %d" % (3 * SLOT))
        a("s_cselect_b32 s61, 0, s61")

    def stats_stage():
        a("v_add_u32 v%d, s62, v%d" % (vt, vlin))
        for i in range(nx):
            a("ds_read_b128 v[%d:%d], v%d offset:%d" % (vd + 4 * i, vd + 4 * i + 3, vt, 4096 * i))
        a("s_add_u32 s62, s62, %d" % SLOT)
        a("s_cmp_eq_u32 s62, %d" % (3 * SLOT))
        a("s_cselect_b32 s62, 0, s62")
        for i in range(nx):
            a("s_waitcnt lgkmcnt(%d)" % (nx - 1 - i))
            for r in range(4):
                a("v_dot2_f32_bf16 v%d, v%d, v%d, v%d" % (vsq + i, vd + 4 * i + r, vd + 4 * i + r, vsq + i))
                a("v_dot2_f32_bf16 v%d, v%d, v%d, v%d" % (vsum + i, vd + 4 * i + r, vones, vsum + i))

    L1 = a.newlabel("ld%s_pro" % typ)
    a("s_mov_b32 s70, 0")
    a.label(L1)
    issue_stage()
    a("s_add_u32 s70, s70, 1")
    a("s_cmp_lt_u32 s70, 3")
    a("s_cbranch_scc1 %s" % L1)
    stamp(a, 1, 0, 120, SRD_WS, sWAVE) if False else None
    a("s_waitcnt vmcnt(%d)" % (2 * nper))
    a("s_barrier")
    stats_stage()
    L2 = a.newlabel("ld%s_loop" % typ)
    a("s_mov_b32 s70, 1")
    a.label(L2)
    a("s_waitcnt vmcnt(%d)" % nper)
    a("s_barrier")
    issue_stage()
    stats_stage()
    a("s_add_u32 s70, s70, 1")
    a("s_cmp_lt_u32 s70, 8")
    a("s_cbranch_scc1 %s" % L2)
    a("s_waitcnt vmcnt(%d)" % nper)
    a("s_barrier")
    stats_stage()
    a("s_waitcnt vmcnt(0)")
    a("s_barrier")
    stats_stage()
    a("s_nop 3")
    loader_stats_final(a, nx, vsum, vsq, vt, lw)
    a("s_barrier")
    a("s_endpgm")


def gen_compute_A(a):
    R = Regs("v", 1, 256)
    NB, PD = 6, 5
    accQ = [[R.alloc(4, 4) for t in range(5)] for rt in range(2)]
    accK = [[R.alloc(4, 4) for t in range(5)] for rt in range(2)]
    accV = [[R.alloc(4, 4) for t in range(5)] for rt in range(2)]
    FA = [[R.alloc(4, 4) for rt in range(2)] for b in range(2)]
    FB = [R.alloc(4, 4) for i in range(NB)]
    vA0b, vA1b, vBb = R.alloc(1), R.alloc(1), R.alloc(1)
    vA0, vA1, vB = R.alloc(1), R.alloc(1), R.alloc(1)
    vones = R.alloc(1)
    vg, vi = R.alloc(1), R.alloc(1)
    vt = R.alloc(4)
    w = sW
    a("v_lshrrev_b32 v%d, 4, v0" % vg)
    a("v_and_b32 v%d, 15, v0" % vi)
    a("v_lshrrev_b32 v%d, 1, v%d" % (vt, vi))
    a("v_xor_b32 v%d, v%d, v%d" % (vt, vt, vg))
    a("v_lshlrev_b32 v%d, 4, v%d" % (vt, vt))
    a("v_lshl_add_u32 v%d, v%d, 7, v%d" % (vt, vi, vt))
    a("s_lshl_b32 s50, s%d, 12" % w)
    a("v_add_u32 v%d, s50, v%d" % (vA0b, vt))
    a("v_xor_b32 v%d, 64, v%d" % (vA1b, vA0b))
    a("v_lshrrev_b32 v%d, 1, v%d" % (vt, vg))
    a("v_lshlrev_b32 v%d, 4, v%d" % (vt, vt))
    a("v_and_b32 v%d, 1, v%d" % (vt + 1, vg))
    a("v_lshl_add_u32 v%d, v%d, 2, v%d" % (vt, vt + 1, vt))
    a("v_lshrrev_b32 v%d, 2, v%d" % (vt + 1, vi))
    a("v_add_u32 v%d, v%d, v%d" % (vt, vt, vt + 1))
    a("v_mul_u32_u24 v%d, 480, v%d" % (vt, vt))
    a("v_and_b32 v%d, 3, v0" % (vt + 1))
    a("v_lshl_add_u32 v%d, v%d, 3, v%d" % (vt, vt + 1, vt))
    a("v_add_u32 v%d, 16384, v%d" % (vBb, vt))
    a("v_mov_b32 v%d, 0x%x" % (vones, ONES))
    a("s_mov_b32 s40, 0x00010001")
    a("s_cmp_eq_u32 s%d, 0" % w)
    a("s_cselect_b32 s40, s40, 0")
    a("s_mov_b32 s41, s40")
    for acc in accQ + accK + accV:
        for t in acc:
            for r in range(4):
                a("v_mov_b32 v%d, 0" % (t + r))
    a("s_mov_b32 s61, 0")
    a("s_mov_b32 s70, 0")
    q = LdsQ(a)

    def set_addr():
        a("v_add_u32 v%d, s61, v%d" % (vA0, vA0b))
        a("v_add_u32 v%d, s61, v%d" % (vA1, vA1b))
        a("v_add_u32 v%d, s61, v%d" % (vB, vBb))
        a("s_add_u32 s61, s61, %d" % A_SLOT)
        a("s_cmp_eq_u32 s61, %d" % (3 * A_SLOT))
        a("s_cselect_b32 s61, 0, s61")

    def read_A(ks):
        for rt in range(2):
            q.issue("ds_read_b128 v[%d:%d], v%d offset:%d" % (FA[ks][rt], FA[ks][rt] + 3, vA0 if ks == 0 else vA1, 2048 * rt), ("A", ks))

    def read_B(n):
        n30 = n % 30
        ks, t = n30 // 15, n30 % 15
        fb = FB[n % NB]
        for h in range(2):
            off = ks * 32 * 480 + h * 8 * 480 + t * 32
            q.issue("ds_read_b64_tr_b16 v[%d:%d], v%d offset:%d" % (fb + 2 * h, fb + 2 * h + 1, vB, off), ("B", n30))

    def fix_ones(ks):
        for r in range(4):
            a("v_cndmask_b32 v%d, v%d, v%d, s[40:41]" % (FA[ks][0] + r, FA[ks][0] + r, vones))

    def mfmas(n):
        ks, t = n // 15, n % 15
        fb = FB[n % NB]
        for rt in (1, 0):
            fa = FA[ks][rt]
            if t < 10:
                acc = accQ[rt][t] if t < 5 else accK[rt][t - 5]
                a("v_mfma_f32_16x16x32_bf16 v[%d:%d], v[%d:%d], v[%d:%d], v[%d:%d]" % (acc, acc + 3, fb, fb + 3, fa, fa + 3, acc, acc + 3))
            else:
                acc = accV[rt][t - 10]
                a("v_mfma_f32_16x16x32_bf16 v[%d:%d], v[%d:%d], v[%d:%d], v[%d:%d]" % (acc, acc + 3, fa, fa + 3, fb, fb + 3, acc, acc + 3))

    a("s_barrier")
    set_addr()
    read_A(0)
    for n in range(PD):
        read_B(n)
    q0 = list(q.q)
    L = a.newlabel("cA_loop")
    a.label(L)
    for n in range(30):
        if n == 9:
            read_A(1)
        if n + PD < 30:
            read_B(n + PD)
        elif n >= 27:
            read_B(n + PD)
        q.wait(("B", n))
        if n == 0:
            q.wait(("A", 0))
            fix_ones(0)
        if n == 14:
            q.wait(("A", 1))
            fix_ones(1)
        mfmas(n)
        if n == 26:
            q.drain()
            a("s_barrier")
            set_addr()
            read_A(0)
            read_B(30)
            read_B(31)
    assert q.q == q0, (q.q, q0)
    a("s_add_u32 s70, s70, 1")
    a("s_cmp_lt_u32 s70, 10")
    a("s_cbranch_scc1 %s" % L)
    q.drain()
    stamp(a, 2, 0, 250, SRD_WS, sWAVE)

    E = Regs("v", (R.hi + 3) // 4 * 4, 250)
    bias = E.alloc(8, 2)
    bias0a = E.alloc(4, 2)
    vninf = E.alloc(1)
    vzero = E.alloc(1)
    E2start = (E.next + 3) // 4 * 4
    E = Regs("v", E2start, 250)
    T = Regs("v", FA[0][0], FB[-1] + 4)
    Lskip = a.newlabel("cA_nocs")
    a("v_lshlrev_b32 v%d, 4, v%d" % (vt, vg))
    a("v_add_u32 v%d, 0x%x, v%d" % (vt, CS_OFF, vt))
    a("v_lshlrev_b32 v%d, 2, v%d" % (vt + 1, vi))
    a("v_add_u32 v%d, 0x%x, v%d" % (vt + 1, CS_OFF + 640, vt + 1))
    a("s_cmp_lg_u32 s%d, 0" % w)
    a("s_cbranch_scc1 %s" % Lskip)
    a("s_mov_b64 exec, s[40:41]")
    for t in range(5):
        a("ds_write_b128 v%d, v[%d:%d] offset:%d" % (vt, accQ[0][t], accQ[0][t] + 3, 64 * t))
        a("ds_write_b128 v%d, v[%d:%d] offset:%d" % (vt, accK[0][t], accK[0][t] + 3, 320 + 64 * t))
    a("s_mov_b64 exec, 0xffff")
    for t in range(5):
        a("ds_write_b32 v%d, v%d offset:%d" % (vt + 1, accV[0][t], 64 * t))
    a("s_mov_b64 exec, -1")
    a.label(Lskip)
    st_sw = [E.alloc(2, 2) for rt in range(2)]
    st_r = [E.alloc(4, 4) for rt in range(2)]
    st_m = [E.alloc(4, 4) for rt in range(2)]
    a("s_lshl_b32 s50, s%d, 7" % w)
    a("v_lshlrev_b32 v%d, 2, v%d" % (vt + 2, vi))
    a("v_add_u32 v%d, s50, v%d" % (vt + 2, vt + 2))
    a("v_add_u32 v%d, 0x%x, v%d" % (vt + 2, STAT_OFF, vt + 2))
    a("v_lshlrev_b32 v%d, 4, v%d" % (vt + 3, vg))
    a("v_add_u32 v%d, s50, v%d" % (vt + 3, vt + 3))
    a("v_add_u32 v%d, 0x%x, v%d" % (vt + 3, STAT_OFF, vt + 3))
    for rt in range(2):
        a("ds_read_b32 v%d, v%d offset:%d" % (st_sw[rt], vt + 2, 64 * rt))
        a("ds_read_b32 v%d, v%d offset:%d" % (st_sw[rt] + 1, vt + 2, 640 + 64 * rt))
        a("ds_read_b128 v[%d:%d], v%d offset:%d" % (st_r[rt], st_r[rt] + 3, vt + 3, 64 * rt))
        a("ds_read_b128 v[%d:%d], v%d offset:%d" % (st_m[rt], st_m[rt] + 3, vt + 3, 640 + 64 * rt))
    GE = {1: 42, 2: 44, 3: 46}
    a("s_mov_b32 s42, 0xffff0000")
    a("s_mov_b32 s43, -1")
    a("s_mov_b32 s44, 0")
    a("s_mov_b32 s45, -1")
    a("s_mov_b32 s46, 0")
    a("s_mov_b32 s47, 0xffff0000")
    a("v_mov_b32 v%d, 0x%x" % (vninf, NEG_INF))
    a("v_mov_b32 v%d, 0" % vzero)
    td = T.alloc(2)
    a("v_lshlrev_b32 v%d, 2, v%d" % (td, vg))
    a("v_sub_u32 v%d, v%d, v%d" % (td, vi, td))
    for half in range(2):
        for r in range(4):
            k = 16 - 16 * half - r
            a("v_add_u32 v%d, %d, v%d" % (td + 1, k, td))
            a("v_and_b32 v%d, 0xfffffff1, v%d" % (td + 1, td + 1))
            a("v_cmp_eq_u32 vcc, 0, v%d" % (td + 1))
            a("v_cndmask_b32 v%d, v%d, v%d, vcc" % (bias + 4 * half + r, vninf, vzero))
    a("s_or_b32 s50, s%d, s%d" % (sM, w))
    a("s_cmp_eq_u32 s50, 0")
    a("s_cselect_b64 s[48:49], -1, 0")
    for r in range(4):
        a("v_cndmask_b32 v%d, v%d, v%d, s[48:49]" % (bias0a + r, bias + r, vninf))
    a("s_waitcnt lgkmcnt(0)")
    a("s_barrier")
    Qm = [accQ[rt][0] for rt in range(2)]
    Kp = [accK[0][0] + 10, accK[0][0], accK[1][0]]
    T = Regs("v", FA[0][0], FB[-1] + 4)
    Vp = [T.alloc(6, 2) for t in range(5)]
    csq = T.alloc(4, 4)
    csk = T.alloc(4, 4)
    csv = E.alloc(2, 2)
    tmp = E.alloc(4, 2)

    def corr_sw(acc, cs, st, dst):
        for h in range(2):
            a("v_pk_mul_f32 v[%d:%d], v[%d:%d], v[%d:%d] op_sel:[0,1] op_sel_hi:[1,1]" % (tmp + 2 * h, tmp + 2 * h + 1, cs + 2 * h, cs + 2 * h + 1, st, st + 1))
        for h in range(2):
            a("v_pk_fma_f32 v[%d:%d], v[%d:%d], v[%d:%d], v[%d:%d] op_sel_hi:[1,0,1]" % (acc + 2 * h, acc + 2 * h + 1, acc + 2 * h, acc + 2 * h + 1, st, st + 1, tmp + 2 * h, tmp + 2 * h + 1))
        for h in range(2):
            a("v_cvt_pk_bf16_f32 v%d, v%d, v%d" % (dst + h, acc + 2 * h, acc + 2 * h + 1))

    for t in range(5):
        a("ds_read_b128 v[%d:%d], v%d offset:%d" % (csk, csk + 3, vt, 320 + 64 * t))
        a("ds_read_b32 v%d, v%d offset:%d" % (csv, vt + 1, 64 * t))
        a("ds_read_b128 v[%d:%d], v%d offset:%d" % (csq, csq + 3, vt, 64 * t))
        a("s_waitcnt lgkmcnt(2)")
        for rt in range(2):
            corr_sw(accK[rt][t], csk, st_sw[rt], Kp[1 + rt] + 2 * t)
        a("s_waitcnt lgkmcnt(1)")
        for rt in range(2):
            acc = accV[rt][t]
            for h in range(2):
                a("v_pk_mul_f32 v[%d:%d], v[%d:%d], v[%d:%d] op_sel_hi:[1,0]" % (tmp + 2 * h, tmp + 2 * h + 1, st_m[rt] + 2 * h, st_m[rt] + 2 * h + 1, csv, csv + 1))
            for h in range(2):
                a("v_pk_fma_f32 v[%d:%d], v[%d:%d], v[%d:%d], v[%d:%d]" % (acc + 2 * h, acc + 2 * h + 1, acc + 2 * h, acc + 2 * h + 1, st_r[rt] + 2 * h, st_r[rt] + 2 * h + 1, tmp + 2 * h, tmp + 2 * h + 1))
            for h in range(2):
                a("v_cvt_pk_bf16_f32 v%d, v%d, v%d" % (Vp[t] + 2 + 2 * rt + h, acc + 2 * h, acc + 2 * h + 1))
        a("s_waitcnt lgkmcnt(0)")
        for rt in range(2):
            if t == 0:
                corr_sw(accQ[rt][t], csq, st_sw[rt], Qm[rt])
            elif t == 4:
                corr_sw(accQ[rt][t], csq, st_sw[rt], Qm[rt] + 14)
            else:
                hi = Qm[rt] + 4 * t
                lo = Qm[rt] + 4 * t - 2
                corr_sw(accQ[rt][t], csq, st_sw[rt], hi)
                for h in range(2):
                    a("v_cndmask_b32 v%d, v%d, v%d, s[%d:%d]" % (lo + h, hi + h, vzero, GE[t], GE[t] + 1))
                for h in range(2):
                    a("v_cndmask_b32 v%d, v%d, v%d, s[%d:%d]" % (hi + h, vzero, hi + h, GE[t], GE[t] + 1))
    a("s_mul_i32 s50, s%d, 5120" % w)
    a("v_lshlrev_b32 v%d, 3, v0" % (vt + 2))
    a("v_add_u32 v%d, s50, v%d" % (vt + 3, vt + 2))
    for t in range(5):
        a("ds_write_b64 v%d, v[%d:%d] offset:%d" % (vt + 3, Kp[2] + 2 * t, Kp[2] + 2 * t + 1, 512 * t))
        a("ds_write_b64 v%d, v[%d:%d] offset:%d" % (vt + 3, Vp[t] + 4, Vp[t] + 5, 2560 + 512 * t))
    a("s_add_u32 s50, s%d, 3" % w)
    a("s_and_b32 s50, s50, 3")
    a("s_mul_i32 s50, s50, 5120")
    a("v_add_u32 v%d, s50, v%d" % (vt + 3, vt + 2))
    a("s_waitcnt lgkmcnt(0)")
    a("s_barrier")
    for t in range(5):
        a("ds_read_b64 v[%d:%d], v%d offset:%d" % (Kp[0] + 2 * t, Kp[0] + 2 * t + 1, vt + 3, 512 * t))
        a("ds_read_b64 v[%d:%d], v%d offset:%d" % (Vp[t], Vp[t] + 1, vt + 3, 2560 + 512 * t))

    X = Regs("v", accV[0][0], accV[1][4] + 4)
    Sreg = [X.alloc(8, 4) for h in range(4)]
    mx = [X.alloc(2, 2) for h in range(4)]
    Olo = [Sreg[h] for h in range(4)]
    Ohi = [Sreg[h] + 4 for h in range(4)]
    X = Regs("v", E2start, 250)
    Pp = [X.alloc(4, 4) for h in range(4)]
    sums = [X.alloc(4, 4) for h in range(4)]
    onesf = X.alloc(4, 4)
    rsel = X.alloc(2, 2)
    Op = X.alloc(10, 2)
    vst = X.alloc(1)
    for r in range(4):
        a("v_mov_b32 v%d, 0x%x" % (onesf + r, ONES))
    import struct
    cval = (20.0 ** -0.5) * 1.4426950408889634
    cbits = struct.unpack("<I", struct.pack("<f", cval))[0]
    a("s_mov_b32 s52, 0x%x" % cbits)
    a("s_mov_b32 s53, 0x%x" % cbits)
    a("v_lshlrev_b32 v%d, 4, v0" % vst)

    def attention(rt):
        kprev, kcur = Kp[rt], Kp[rt + 1]
        b0 = bias0a if rt == 1 else bias
        for h in range(4):
            a("v_mfma_f32_16x16x32_bf16 v[%d:%d], v[%d:%d], v[%d:%d], 0" % (Sreg[h], Sreg[h] + 3, kprev + 2 * h, kprev + 2 * h + 3, Qm[rt] + 4 * h, Qm[rt] + 4 * h + 3))
            a("v_mfma_f32_16x16x32_bf16 v[%d:%d], v[%d:%d], v[%d:%d], 0" % (Sreg[h] + 4, Sreg[h] + 7, kcur + 2 * h, kcur + 2 * h + 3, Qm[rt] + 4 * h, Qm[rt] + 4 * h + 3))
        for h in range(4):
            for p in range(4):
                bb = (b0 + 2 * p) if p < 2 else (bias + 2 * p)
                a("v_pk_fma_f32 v[%d:%d], v[%d:%d], s[52:53], v[%d:%d]" % (Sreg[h] + 2 * p, Sreg[h] + 2 * p + 1, Sreg[h] + 2 * p, Sreg[h] + 2 * p + 1, bb, bb + 1))
        for h in range(4):
            S = Sreg[h]
            a("v_max3_f32 v%d, v%d, v%d, v%d" % (mx[h], S, S + 1, S + 2))
            a("v_max3_f32 v%d, v%d, v%d, v%d" % (mx[h] + 1, S + 3, S + 4, S + 5))
            a("v_max3_f32 v%d, v%d, v%d, v%d" % (mx[h], mx[h], S + 6, S + 7))
            a("v_max_f32 v%d, v%d, v%d" % (mx[h], mx[h], mx[h] + 1))
            a("v_mov_b32 v%d, v%d" % (mx[h] + 1, mx[h]))
        for h in range(4):
            a("v_permlane32_swap_b32 v%d, v%d" % (mx[h], mx[h] + 1))
        for h in range(4):
            a("v_max_f32 v%d, v%d, v%d" % (mx[h], mx[h], mx[h] + 1))
            a("v_mov_b32 v%d, v%d" % (mx[h] + 1, mx[h]))
        for h in range(4):
            a("v_permlane16_swap_b32 v%d, v%d" % (mx[h], mx[h] + 1))
        for h in range(4):
            a("v_max_f32 v%d, v%d, v%d" % (mx[h], mx[h], mx[h] + 1))
        for h in range(4):
            S = Sreg[h]
            for p in range(4):
                a("v_pk_add_f32 v[%d:%d], v[%d:%d], v[%d:%d] op_sel_hi:[1,0] neg_lo:[0,1] neg_hi:[0,1]" % (S + 2 * p, S + 2 * p + 1, S + 2 * p, S + 2 * p + 1, mx[h], mx[h] + 1))
            for p in range(8):
                a("v_exp_f32 v%d, v%d" % (S + p, S + p))
        for h in range(4):
            S = Sreg[h]
            for p in range(4):
                a("v_cvt_pk_bf16_f32 v%d, v%d, v%d" % (Pp[h] + p, S + 2 * p, S + 2 * p + 1))
        for h in range(4):
            a("v_mfma_f32_16x16x32_bf16 v[%d:%d], v[%d:%d], v[%d:%d], 0" % (sums[h], sums[h] + 3, onesf, onesf + 3, Pp[h], Pp[h] + 3))
        for h in range(4):
            vlo = Vp[h] + 2 * rt
            vhi = Vp[h + 1] + 2 * rt
            a("v_mfma_f32_16x16x32_bf16 v[%d:%d], v[%d:%d], v[%d:%d], 0" % (Olo[h], Olo[h] + 3, vlo, vlo + 3, Pp[h], Pp[h] + 3))
            a("v_mfma_f32_16x16x32_bf16 v[%d:%d], v[%d:%d], v[%d:%d], 0" % (Ohi[h], Ohi[h] + 3, vhi, vhi + 3, Pp[h], Pp[h] + 3))
        for h in range(4):
            a("v_rcp_f32 v%d, v%d" % (sums[h], sums[h]))
        for t in range(5):
            if t == 0:
                o, rr = Olo[0], sums[0]
            elif t == 4:
                o, rr = Ohi[3], sums[3]
            else:
                o, rr = Olo[t], rsel
                for r in range(4):
                    a("v_cndmask_b32 v%d, v%d, v%d, s[%d:%d]" % (o + r, Ohi[t - 1] + r, o + r, GE[t], GE[t] + 1))
                a("v_cndmask_b32 v%d, v%d, v%d, s[%d:%d]" % (rsel, sums[t - 1], sums[t], GE[t], GE[t] + 1))
            for h in range(2):
                a("v_pk_mul_f32 v[%d:%d], v[%d:%d], v[%d:%d] op_sel_hi:[1,0]" % (o + 2 * h, o + 2 * h + 1, o + 2 * h, o + 2 * h + 1, rr, rr + 1))
            for h in range(2):
                a("v_cvt_pk_bf16_f32 v%d, v%d, v%d" % (Op + 2 * t + h, o + 2 * h, o + 2 * h + 1))
        Ls = a.newlabel("cA_nost")
        a("s_mul_i32 s54, s%d, 7" % sM)
        a("s_lshl_b32 s55, s%d, 1" % w)
        a("s_add_u32 s54, s54, s55")
        if rt == 0:
            a("s_cmp_eq_u32 s%d, 0" % w)
            a("s_cbranch_scc1 %s" % Ls)
            a("s_sub_u32 s54, s54, 1")
        a("s_cmp_ge_u32 s54, 128")
        a("s_cbranch_scc1 %s" % Ls)
        a("s_lshr_b32 s55, s54, 2")
        a("s_mul_i32 s55, s55, %d" % (68 * 4096))
        a("s_and_b32 s54, s54, 3")
        a("s_lshl_b32 s54, s54, 10")
        a("s_add_u32 s54, s54, s55")
        a("s_mul_i32 s55, s%d, 5" % sC)
        for t in range(5):
            a("s_add_u32 s56, s55, %d" % t)
            a("s_lshr_b32 s57, s56, 1")
            a("s_lshl_b32 s57, s57, 12")
            a("s_and_b32 s56, s56, 1")
            a("s_lshl_b32 s56, s56, 3")
            a("s_add_u32 s56, s56, s57")
            a("s_add_u32 s56, s56, s54")
            a("buffer_store_dwordx2 v[%d:%d], v%d, s[%d:%d], s56 offen" % (Op + 2 * t, Op + 2 * t + 1, vst, SRD_WS, SRD_WS + 3))
        a.label(Ls)
        a("s_nop 1")

    attention(1)
    a("s_waitcnt lgkmcnt(0)")
    a("s_waitcnt vmcnt(0)")
    attention(0)
    stamp(a, 3, 0, 250, SRD_WS, sWAVE)
    a("s_endpgm")
    return max(R.hi, E.hi, X.hi)


def gen_compute_B(a):
    R = Regs("v", 1, 256)
    NB, PD = 4, 3
    acc = [[R.alloc(4, 4) for t in range(6)] for rt in range(5)]
    accC = [R.alloc(4, 4) for t in range(6)]
    FA = [[R.alloc(4, 4) for rt in range(5)] for b in range(2)]
    FB = [R.alloc(4, 4) for i in range(NB)]
    onesf = R.alloc(4, 4)
    vA0b, vA1b = R.alloc(1), R.alloc(1)
    vBb = R.alloc(6)
    vA0, vA1 = R.alloc(1), R.alloc(1)
    vB = R.alloc(6)
    vb1 = R.alloc(12, 2)
    vg, vi = R.alloc(1), R.alloc(1)
    vt = R.alloc(4)
    w = sW
    a("s_lshr_b32 s40, s%d, 1" % w)
    a("s_and_b32 s41, s%d, 1" % w)
    a("v_lshrrev_b32 v%d, 4, v0" % vg)
    a("v_and_b32 v%d, 15, v0" % vi)
    a("v_lshrrev_b32 v%d, 1, v%d" % (vt, vi))
    a("v_xor_b32 v%d, v%d, v%d" % (vt, vt, vg))
    a("v_lshlrev_b32 v%d, 4, v%d" % (vt, vt))
    a("v_lshl_add_u32 v%d, v%d, 7, v%d" % (vt, vi, vt))
    a("s_mul_i32 s50, s40, %d" % (5 * 2048))
    a("v_add_u32 v%d, s50, v%d" % (vA0b, vt))
    a("v_xor_b32 v%d, 64, v%d" % (vA1b, vA0b))
    a("v_lshrrev_b32 v%d, 1, v%d" % (vt, vg))
    a("v_lshlrev_b32 v%d, 4, v%d" % (vt, vt))
    a("v_and_b32 v%d, 1, v%d" % (vt + 1, vg))
    a("v_lshl_add_u32 v%d, v%d, 2, v%d" % (vt, vt + 1, vt))
    a("v_lshrrev_b32 v%d, 2, v%d" % (vt + 1, vi))
    a("v_add_u32 v%d, v%d, v%d" % (vt, vt, vt + 1))
    a("v_bfe_u32 v%d, v%d, 1, 2" % (vt + 2, vt))
    a("v_mul_u32_u24 v%d, 384, v%d" % (vt, vt))
    a("v_and_b32 v%d, 3, v0" % (vt + 1))
    a("v_lshl_add_u32 v%d, v%d, 3, v%d" % (vt, vt + 1, vt))
    a("v_add_u32 v%d, 20480, v%d" % (vt, vt))
    a("s_mul_i32 s50, s41, 6")
    a("s_mul_i32 s51, s40, 3")
    for i in range(6):
        a("s_add_u32 s52, s51, %d" % i)
        a("s_cmp_ge_u32 s52, 6")
        a("s_cselect_b32 s53, 6, 0")
        a("s_sub_u32 s52, s52, s53")
        a("s_add_u32 s%d, s52, s50" % (42 + i))
        a("v_xor_b32 v%d, s%d, v%d" % (vt + 1, 42 + i, vt + 2))
        a("v_lshl_add_u32 v%d, v%d, 5, v%d" % (vBb + i, vt + 1, vt))
    a("v_lshlrev_b32 v%d, 3, v%d" % (vt + 3, vg))
    a("s_mul_i32 s50, s%d, 384" % sC)
    for i in range(6):
        a("s_lshl_b32 s51, s%d, 5" % (42 + i))
        a("s_add_u32 s51, s51, s50")
        a("buffer_load_dwordx2 v[%d:%d], v%d, s[%d:%d], s51 offen" % (vb1 + 2 * i, vb1 + 2 * i + 1, vt + 3, SRD_B1, SRD_B1 + 3))
    for r in range(4):
        a("v_mov_b32 v%d, 0x%x" % (onesf + r, ONES))
    for row in acc + [accC[:3]]:
        for t in row:
            for r in range(4):
                a("v_mov_b32 v%d, 0" % (t + r))
    a("s_mov_b32 s61, 0")
    a("s_mov_b32 s70, 0")
    q = LdsQ(a)

    def set_addr():
        a("v_add_u32 v%d, s61, v%d" % (vA0, vA0b))
        a("v_add_u32 v%d, s61, v%d" % (vA1, vA1b))
        for i in range(6):
            a("v_add_u32 v%d, s61, v%d" % (vB + i, vBb + i))
        a("s_add_u32 s61, s61, %d" % B_SLOT)
        a("s_cmp_eq_u32 s61, %d" % (3 * B_SLOT))
        a("s_cselect_b32 s61, 0, s61")

    def read_A(ks, rts):
        for rt in rts:
            q.issue("ds_read_b128 v[%d:%d], v%d offset:%d" % (FA[ks][rt], FA[ks][rt] + 3, vA0 if ks == 0 else vA1, 2048 * rt), ("A", ks))

    def read_B(n):
        n12 = n % 12
        ks, t = n12 // 6, n12 % 6
        fb = FB[n % NB]
        for h in range(2):
            off = ks * 32 * 384 + h * 8 * 384
            q.issue("ds_read_b64_tr_b16 v[%d:%d], v%d offset:%d" % (fb + 2 * h, fb + 2 * h + 1, vB + t, off), ("B", n12))

    def mfmas(n):
        ks, t = n // 6, n % 6
        fb = FB[n % NB]
        for rt in range(5):
            fa = FA[ks][rt]
            ac = acc[rt][t]
            a("v_mfma_f32_16x16x32_bf16 v[%d:%d], v[%d:%d], v[%d:%d], v[%d:%d]" % (ac, ac + 3, fb, fb + 3, fa, fa + 3, ac, ac + 3))
        if t < 3:
            ac = accC[t]
            a("v_mfma_f32_16x16x32_bf16 v[%d:%d], v[%d:%d], v[%d:%d], v[%d:%d]" % (ac, ac + 3, fb, fb + 3, onesf, onesf + 3, ac, ac + 3))

    a("s_barrier")
    set_addr()
    read_A(0, range(5))
    for n in range(PD):
        read_B(n)
    q0 = list(q.q)
    L = a.newlabel("cB_loop")
    a.label(L)
    for n in range(12):
        if n == 1:
            read_A(1, (0, 1, 2))
        if n == 2:
            read_A(1, (3, 4))
        if n + PD < 12 or n >= 10:
            read_B(n + PD)
        q.wait(("B", n))
        if n == 0:
            q.wait(("A", 0))
        if n == 6:
            q.wait(("A", 1))
        mfmas(n)
        if n == 9:
            q.drain()
            a("s_barrier")
            set_addr()
            read_A(0, range(5))
            read_B(12)
    assert q.q == q0, (q.q, q0)
    a("s_add_u32 s70, s70, 1")
    a("s_cmp_lt_u32 s70, 10")
    a("s_cbranch_scc1 %s" % L)
    q.drain()
    stamp(a, 2, 0, 250, SRD_WS, sWAVE)
    a("v_lshlrev_b32 v%d, 4, v%d" % (vt, vg))
    a("v_add_u32 v%d, 0x%x, v%d" % (vt, CS_OFF, vt))
    T = Regs("v", FA[0][0], FB[-1] + 4)
    vca = T.alloc(6)
    for i in range(6):
        a("s_lshl_b32 s50, s%d, 6" % (42 + i))
        a("v_add_u32 v%d, s50, v%d" % (vca + i, vt))
    a("s_mov_b32 exec_lo, 0x00010001")
    a("s_mov_b32 exec_hi, 0x00010001")
    for i in range(3):
        a("ds_write_b128 v%d, v[%d:%d]" % (vca + i, accC[i], accC[i] + 3))
    a("s_mov_b64 exec, -1")
    st = [T.alloc(2, 2) for rt in range(5)]
    a("s_mul_i32 s50, s40, 320")
    a("v_lshlrev_b32 v%d, 2, v%d" % (vt + 2, vi))
    a("v_add_u32 v%d, s50, v%d" % (vt + 2, vt + 2))
    a("v_add_u32 v%d, 0x%x, v%d" % (vt + 2, STAT_OFF, vt + 2))
    for rt in range(5):
        a("ds_read_b32 v%d, v%d offset:%d" % (st[rt], vt + 2, 64 * rt))
        a("ds_read_b32 v%d, v%d offset:%d" % (st[rt] + 1, vt + 2, 640 + 64 * rt))
    a("s_waitcnt lgkmcnt(0)")
    a("s_barrier")
    for i in range(3, 6):
        a("ds_read_b128 v[%d:%d], v%d" % (accC[i], accC[i] + 3, vca + i))
    bf = T.alloc(24, 2)
    a("s_waitcnt vmcnt(0)")
    for i in range(6):
        for d in range(2):
            a("v_lshlrev_b32 v%d, 16, v%d" % (bf + 4 * i + 2 * d, vb1 + 2 * i + d))
            a("v_and_b32 v%d, 0xffff0000, v%d" % (bf + 4 * i + 2 * d + 1, vb1 + 2 * i + d))
    tmp = T.alloc(4, 2)
    vst = T.alloc(1)
    a("v_lshlrev_b32 v%d, 4, v0" % vst)
    a("s_waitcnt lgkmcnt(0)")
    a("s_mul_i32 s50, s%d, 6" % sC)
    a("s_add_u32 s50, s50, 20")
    for i in range(6):
        a("s_lshr_b32 s51, s%d, 1" % (42 + i))
        a("s_add_u32 s51, s51, s50")
        a("s_lshl_b32 s51, s51, 12")
        a("s_and_b32 s52, s%d, 1" % (42 + i))
        a("s_lshl_b32 s52, s52, 3")
        a("s_add_u32 s%d, s51, s52" % (72 + i))
    Lend = a.newlabel("cB_end")
    for rt in range(5):
        a("s_mul_i32 s54, s%d, 10" % sM)
        a("s_mul_i32 s55, s40, 5")
        a("s_add_u32 s54, s54, s55")
        a("s_add_u32 s54, s54, %d" % rt)
        a("s_cmp_ge_u32 s54, 128")
        a("s_cbranch_scc1 %s" % Lend)
        a("s_lshr_b32 s55, s54, 2")
        a("s_mul_i32 s55, s55, %d" % (68 * 4096))
        a("s_and_b32 s54, s54, 3")
        a("s_lshl_b32 s54, s54, 10")
        a("s_add_u32 s54, s54, s55")
        for i in range(6):
            ac = acc[rt][i]
            cs = accC[i]
            for h in range(2):
                a("v_pk_fma_f32 v[%d:%d], v[%d:%d], v[%d:%d], v[%d:%d] op_sel:[0,1,0] op_sel_hi:[1,1,1]" % (tmp + 2 * h, tmp + 2 * h + 1, cs + 2 * h, cs + 2 * h + 1, st[rt], st[rt] + 1, bf + 4 * i + 2 * h, bf + 4 * i + 2 * h + 1))
            for h in range(2):
                a("v_pk_fma_f32 v[%d:%d], v[%d:%d], v[%d:%d], v[%d:%d] op_sel_hi:[1,0,1]" % (ac + 2 * h, ac + 2 * h + 1, ac + 2 * h, ac + 2 * h + 1, st[rt], st[rt] + 1, tmp + 2 * h, tmp + 2 * h + 1))
            for r in range(4):
                a("v_max_f32 v%d, 0, v%d" % (ac + r, ac + r))
            for h in range(2):
                a("v_pk_mul_f32 v[%d:%d], v[%d:%d], v[%d:%d]" % (ac + 2 * h, ac + 2 * h + 1, ac + 2 * h, ac + 2 * h + 1, ac + 2 * h, ac + 2 * h + 1))
            a("v_cvt_pk_bf16_f32 v%d, v%d, v%d" % (ac, ac, ac + 1))
            a("v_cvt_pk_bf16_f32 v%d, v%d, v%d" % (ac + 1, ac + 2, ac + 3))
            a("s_add_u32 s56, s54, s%d" % (72 + i))
            a("buffer_store_dwordx2 v[%d:%d], v%d, s[%d:%d], s56 offen" % (ac, ac + 1, vst, SRD_WS, SRD_WS + 3))
    a.label(Lend)
    stamp(a, 3, 0, 250, SRD_WS, sWAVE)
    a("s_endpgm")
    return R.hi


def gen_k1(a):
    a.label(K1)
    a("s_cmp_ge_u32 s2, 256")
    a("s_cbranch_scc1 k1_exit")
    a("s_load_dwordx4 s[4:7], s[0:1], 0")
    a("s_load_dwordx4 s[16:19], s[0:1], 32")
    a("s_load_dwordx2 s[20:21], s[0:1], 80")
    a("v_lshrrev_b32 v1, 6, v0")
    a("v_and_b32 v0, 63, v0")
    a("v_readfirstlane_b32 s%d, v1" % sWAVE)
    a("s_and_b32 s40, s2, 7")
    a("s_lshr_b32 s41, s2, 3")
    a("s_lshr_b32 s42, s40, 2")
    a("s_and_b32 s43, s40, 3")
    a("s_and_b32 s44, s41, 1")
    a("s_lshl_b32 s%d, s43, 1" % sC)
    a("s_add_u32 s%d, s%d, s44" % (sC, sC))
    a("s_lshl_b32 s45, s42, 1")
    a("s_sub_u32 s45, 20, s45")
    a("s_mul_i32 s46, s44, 5")
    a("s_and_b32 s%d, s%d, 3" % (sW, sWAVE))
    a("s_waitcnt lgkmcnt(0)")
    srd(a, SRD_X, 4, 5, X_BYTES)
    srd(a, SRD_WS, 20, 21, (STAMP_BASE + (1 << 20)) if STAMPS else A2_BYTES)
    srd(a, SRD_B1, 18, 19, F_ * 2)
    stamp(a, 0, 0, 250, SRD_WS, sWAVE)
    a("s_cmp_ge_u32 s41, s45")
    a("s_cbranch_scc1 k1_typeB")
    srd(a, SRD_W, 6, 7, WQKV_BYTES)
    a("s_lshr_b32 s47, s41, 1")
    a("s_mul_i32 s%d, s42, 10" % sM)
    a("s_add_u32 s%d, s%d, s47" % (sM, sM))
    a("s_add_u32 s%d, s47, s46" % sROT)
    a("s_cmp_ge_u32 s%d, 10" % sROT)
    a("s_cselect_b32 s48, 10, 0")
    a("s_sub_u32 s%d, s%d, s48" % (sROT, sROT))
    a("s_cmp_ge_u32 s%d, 4" % sWAVE)
    a("s_cbranch_scc1 k1_ldA")
    hiA = gen_compute_A(a)
    a.label("k1_ldA")
    gen_loader(a, "A")
    a.label("k1_typeB")
    srd(a, SRD_W, 16, 17, W1_BYTES)
    a("s_sub_u32 s47, s41, s45")
    a("s_lshr_b32 s47, s47, 1")
    a("s_mul_i32 s%d, s42, 6" % sM)
    a("s_add_u32 s%d, s%d, s47" % (sM, sM))
    a("s_lshr_b32 s48, s47, 1")
    a("s_add_u32 s%d, s47, s48" % sROT)
    a("s_add_u32 s%d, s%d, s46" % (sROT, sROT))
    a("s_add_u32 s%d, s%d, 2" % (sROT, sROT))
    a("s_cmp_ge_u32 s%d, 10" % sROT)
    a("s_cselect_b32 s48, 10, 0")
    a("s_sub_u32 s%d, s%d, s48" % (sROT, sROT))
    a("s_cmp_ge_u32 s%d, 4" % sWAVE)
    a("s_cbranch_scc1 k1_ldB")
    hiB = gen_compute_B(a)
    a.label("k1_ldB")
    gen_loader(a, "B")
    a.label("k1_exit")
    a("s_endpgm")
    return max(hiA, hiB)


K2_SLOT = 16384 + 20480
K2_D = 4
LDS2 = K2_SLOT * K2_D
S2_A, S2_WO, S2_W2, S2_W, S2_X, S2_B2, S2_OUT = 8, 12, 16, 20, 24, 28, 40
sMT, sNT = 33, 34


def gen_k2(a):
    a.label(K2)
    a("s_cmp_ge_u32 s2, 256")
    a("s_cbranch_scc1 k2_exit")
    a("s_load_dwordx2 s[4:5], s[0:1], 0")
    a("s_load_dwordx2 s[6:7], s[0:1], 16")
    a("s_load_dwordx4 s[44:47], s[0:1], 48")
    a("s_load_dwordx2 s[48:49], s[0:1], 64")
    a("s_load_dwordx2 s[50:51], s[0:1], 80")
    a("v_lshrrev_b32 v1, 6, v0")
    a("v_and_b32 v0, 63, v0")
    a("v_readfirstlane_b32 s%d, v1" % sWAVE)
    a("s_and_b32 s52, s2, 7")
    a("s_lshr_b32 s53, s2, 3")
    a("s_lshr_b32 s54, s52, 1")
    a("s_and_b32 s55, s52, 1")
    a("s_lshr_b32 s56, s53, 2")
    a("s_and_b32 s57, s53, 3")
    a("s_lshl_b32 s%d, s54, 3" % sMT)
    a("s_add_u32 s%d, s%d, s56" % (sMT, sMT))
    a("s_lshl_b32 s%d, s55, 2" % sNT)
    a("s_add_u32 s%d, s%d, s57" % (sNT, sNT))
    a("s_lshl_b32 s56, s56, 1")
    a("s_lshl_b32 s57, s57, 2")
    a("s_add_u32 s%d, s56, s57" % sROT)
    a("s_cmp_ge_u32 s%d, 17" % sROT)
    a("s_cselect_b32 s56, 17, 0")
    a("s_sub_u32 s%d, s%d, s56" % (sROT, sROT))
    a("s_and_b32 s%d, s%d, 3" % (sW, sWAVE))
    a("s_waitcnt lgkmcnt(0)")
    srd(a, S2_A, 50, 51, (STAMP_BASE + (1 << 20)) if STAMPS else A2_BYTES)
    stamp(a, 0, 1, 126, S2_A, sWAVE)
    a("s_cmp_ge_u32 s%d, 4" % sWAVE)
    a("s_cbranch_scc1 k2_ld")
    srd(a, S2_X, 4, 5, X_BYTES)
    srd(a, S2_B2, 46, 47, D_ * 2)
    srd(a, S2_OUT, 48, 49, X_BYTES)
    R = Regs("v", 1, 128)
    NB, PD = 10, 5
    accS = [R.alloc(4, 4) for t in range(5)]
    accG = [R.alloc(4, 4) for t in range(5)]
    FA = [R.alloc(4, 4) for b in range(2)]
    FB = [R.alloc(4, 4) for i in range(NB)]
    vx = R.alloc(10, 2)
    vb2 = R.alloc(10, 2)
    vAb, vBb, vA, vB = R.alloc(1), R.alloc(1), R.alloc(1), R.alloc(1)
    vg, vi, vo = R.alloc(1), R.alloc(1), R.alloc(1)
    vt = R.alloc(4, 2)
    w = sW
    a("v_lshrrev_b32 v%d, 4, v0" % vg)
    a("v_and_b32 v%d, 15, v0" % vi)
    a("v_lshlrev_b32 v%d, 4, v0" % vt)
    a("s_lshl_b32 s56, s%d, 10" % w)
    a("v_add_u32 v%d, s56, v%d" % (vAb, vt))
    a("v_lshrrev_b32 v%d, 2, v0" % vt)
    a("v_mul_u32_u24 v%d, 160, v%d" % (vt, vt))
    a("v_and_b32 v%d, 3, v0" % (vt + 1))
    a("v_lshl_add_u32 v%d, v%d, 3, v%d" % (vt, vt + 1, vt))
    a("v_add_u32 v%d, 16384, v%d" % (vBb, vt))
    a("s_lshl_b32 s56, s%d, 6" % sMT)
    a("s_lshl_b32 s57, s%d, 4" % w)
    a("s_add_u32 s56, s56, s57")
    a("v_add_u32 v%d, s56, v%d" % (vt, vi))
    a("v_mul_u32_u24 v%d, 0x500, v%d" % (vt, vt))
    a("s_mul_i32 s56, s%d, 160" % sNT)
    a("v_lshlrev_b32 v%d, 3, v%d" % (vt + 1, vg))
    a("v_add_u32 v%d, s56, v%d" % (vt + 1, vt + 1))
    a("v_add_u32 v%d, v%d, v%d" % (vo, vt, vt + 1))
    for t in range(5):
        a("buffer_load_dwordx2 v[%d:%d], v%d, s[%d:%d], 0 offen offset:%d" % (vx + 2 * t, vx + 2 * t + 1, vo, S2_X, S2_X + 3, 32 * t))
        a("buffer_load_dwordx2 v[%d:%d], v%d, s[%d:%d], 0 offen offset:%d" % (vb2 + 2 * t, vb2 + 2 * t + 1, vt + 1, S2_B2, S2_B2 + 3, 32 * t))
    for t in accS + accG:
        for r in range(4):
            a("v_mov_b32 v%d, 0" % (t + r))
    a("s_mov_b32 s61, 0")
    a("s_mov_b32 s70, 0")
    a("s_mov_b32 s60, s%d" % sROT)
    q = LdsQ(a)

    def set_addr():
        a("v_add_u32 v%d, s61, v%d" % (vA, vAb))
        a("v_add_u32 v%d, s61, v%d" % (vB, vBb))
        a("s_add_u32 s61, s61, %d" % K2_SLOT)
        a("s_cmp_eq_u32 s61, %d" % (K2_D * K2_SLOT))
        a("s_cselect_b32 s61, 0, s61")

    def read_A(ks):
        q.issue("ds_read_b128 v[%d:%d], v%d offset:%d" % (FA[ks & 1], FA[ks & 1] + 3, vA, 4096 * ks), ("A", ks))

    def read_B(n):
        n20 = n % 20
        ks, t = n20 // 5, n20 % 5
        fb = FB[n % NB]
        for h in range(2):
            off = ks * 5120 + h * 16 * 160 + t * 32
            q.issue("ds_read_b64_tr_b16 v[%d:%d], v%d offset:%d" % (fb + 2 * h, fb + 2 * h + 1, vB, off), ("B", n20))

    a("s_barrier")
    set_addr()
    read_A(0)
    for n in range(PD):
        read_B(n)
    q0 = list(q.q)
    Ltop = a.newlabel("k2_loop")
    LG = a.newlabel("k2_bodyG")
    Lnext = a.newlabel("k2_next")
    a.label(Ltop)
    a("s_cmp_ge_u32 s60, 5")
    a("s_cbranch_scc1 %s" % LG)

    def body(acc):
        q.q = list(q0)
        for n in range(20):
            ks, t = n // 5, n % 5
            if t == 0 and ks < 3:
                pass
            if n in (0, 5, 10):
                read_A(ks + 1)
            if n + PD < 20 or n >= 16:
                read_B(n + PD)
            q.wait(("B", n))
            q.wait(("A", ks))
            fb = FB[n % NB]
            fa = FA[ks & 1]
            ac = acc[t]
            a("v_mfma_f32_16x16x32_bf16 v[%d:%d], v[%d:%d], v[%d:%d], v[%d:%d]" % (ac, ac + 3, fb, fb + 3, fa, fa + 3, ac, ac + 3))
            if n == 15:
                q.drain()
                a("s_barrier")
                set_addr()
                read_A(0)
                read_B(20)
        assert q.q == q0, (q.q, q0)

    body(accS)
    a("s_branch %s" % Lnext)
    a.label(LG)
    body(accG)
    a.label(Lnext)
    a("s_add_u32 s60, s60, 1")
    a("s_cmp_eq_u32 s60, 17")
    a("s_cselect_b32 s60, 0, s60")
    a("s_add_u32 s70, s70, 1")
    a("s_cmp_lt_u32 s70, 17")
    a("s_cbranch_scc1 %s" % Ltop)
    q.drain()
    stamp(a, 2, 1, 126, S2_A, sWAVE)
    a("s_waitcnt vmcnt(0)")
    a("s_nop 7")
    T = Regs("v", FB[0], FB[-1] + 4)
    tb = T.alloc(4, 2)
    te = T.alloc(4, 2)
    a("s_mov_b32 s56, 0xbfb8aa3b")
    for t in range(5):
        G, Sx = accG[t], accS[t]
        for d in range(2):
            a("v_lshlrev_b32 v%d, 16, v%d" % (tb + 2 * d, vb2 + 2 * t + d))
            a("v_and_b32 v%d, 0xffff0000, v%d" % (tb + 2 * d + 1, vb2 + 2 * t + d))
        for r in range(4):
            a("v_add_f32 v%d, v%d, v%d" % (G + r, G + r, tb + r))
        for r in range(4):
            a("v_mul_f32 v%d, s56, v%d" % (te + r, G + r))
        for r in range(4):
            a("v_exp_f32 v%d, v%d" % (te + r, te + r))
        for r in range(4):
            a("v_add_f32 v%d, 1.0, v%d" % (te + r, te + r))
        for r in range(4):
            a("v_rcp_f32 v%d, v%d" % (te + r, te + r))
        for d in range(2):
            a("v_lshlrev_b32 v%d, 16, v%d" % (tb + 2 * d, vx + 2 * t + d))
            a("v_and_b32 v%d, 0xffff0000, v%d" % (tb + 2 * d + 1, vx + 2 * t + d))
        for r in range(4):
            a("v_mul_f32 v%d, v%d, v%d" % (G + r, G + r, te + r))
        for r in range(4):
            a("v_fma_f32 v%d, v%d, v%d, v%d" % (G + r, G + r, Sx + r, tb + r))
        a("v_cvt_pk_bf16_f32 v%d, v%d, v%d" % (G, G, G + 1))
        a("v_cvt_pk_bf16_f32 v%d, v%d, v%d" % (G + 1, G + 2, G + 3))
        a("buffer_store_dwordx2 v[%d:%d], v%d, s[%d:%d], 0 offen offset:%d" % (G, G + 1, vo, S2_OUT, S2_OUT + 3, 32 * t))
    stamp(a, 3, 1, 126, S2_A, sWAVE)
    a("s_endpgm")
    a.label("k2_ld")
    lw = sW
    a("s_and_b32 s7, s7, 0xffff")
    a("s_and_b32 s45, s45, 0xffff")
    a("s_mov_b32 s%d, 0x20000" % (S2_W + 3))
    vAo = 1
    vWo = 2
    vt = 8
    a("v_lshlrev_b32 v%d, 4, v0" % vAo)
    a("s_mul_i32 s56, s%d, 160" % sNT)
    for i in range(5):
        a("v_add_u32 v%d, %d, v0" % (vt, 64 * i))
        a("v_mul_u32_u24 v%d, 0xcd, v%d" % (vt + 1, vt))
        a("v_lshrrev_b32 v%d, 11, v%d" % (vt + 1, vt + 1))
        a("v_mul_u32_u24 v%d, 10, v%d" % (vt + 2, vt + 1))
        a("v_sub_u32 v%d, v%d, v%d" % (vt + 2, vt, vt + 2))
        a("v_lshlrev_b32 v%d, 4, v%d" % (vt + 2, vt + 2))
        a("v_mul_u32_u24 v%d, 0x500, v%d" % (vt + 1, vt + 1))
        a("v_add_u32 v%d, v%d, v%d" % (vt + 1, vt + 1, vt + 2))
        a("v_add_u32 v%d, s56, v%d" % (vWo + i, vt + 1))
    assert all((p * 205) >> 11 == p // 10 for p in range(320))
    assert all((p * 171) >> 12 == p // 24 for p in range(192))
    assert all((p * 26) >> 8 == p // 10 for p in range(34))
    a("s_mov_b32 s60, s%d" % sROT)
    a("s_mov_b32 s61, 0")
    a("s_mul_i32 s62, s%d, %d" % (sMT, 68 * 4096))
    a("s_lshl_b32 s63, s%d, 12" % lw)
    a("s_add_u32 s62, s62, s63")
    a("s_mul_i32 s64, s%d, 5120" % lw)
    a("s_add_u32 s64, s64, 16384")
    a("s_mul_i32 s69, s%d, %d" % (lw, 32 * 1280))

    def issue_stage():
        a("s_lshl_b32 s65, s60, 14")
        a("s_add_u32 s65, s65, s62")
        a("s_add_u32 m0, s61, s63")
        a("s_cmp_ge_u32 s60, 5")
        a("s_cselect_b32 s%d, s44, s6" % S2_W)
        a("s_cselect_b32 s%d, s45, s7" % (S2_W + 1))
        a("s_cselect_b32 s%d, 0x%x, 0x%x" % (S2_W + 2, W2_BYTES, WO_BYTES)) if False else None
        a("s_mov_b32 s66, 0x%x" % WO_BYTES)
        a("s_cselect_b32 s%d, 0x%x, s66" % (S2_W + 2, W2_BYTES))
        a("s_cselect_b32 s66, 5, 0")
        a("s_sub_u32 s66, s60, s66")
        a("s_mul_i32 s66, s66, %d" % (128 * 1280))
        a("s_add_u32 s66, s66, s69")
        for i in range(4):
            a("buffer_load_dwordx4 v%d, s[%d:%d], s65 offen offset:%d lds" % (vAo, S2_A, S2_A + 3, 1024 * i))
        a("s_add_u32 s67, s61, s64")
        for i in range(5):
            a("s_add_u32 m0, s67, %d" % (1024 * i))
            a("buffer_load_dwordx4 v%d, s[%d:%d], s66 offen lds" % (vWo + i, S2_W, S2_W + 3))
        a("s_add_u32 s60, s60, 1")
        a("s_cmp_eq_u32 s60, 17")
        a("s_cselect_b32 s60, 0, s60")
        a("s_add_u32 s61, s61, %d" % K2_SLOT)
        a("s_cmp_eq_u32 s61, %d" % (K2_D * K2_SLOT))
        a("s_cselect_b32 s61, 0, s61")

    L1 = a.newlabel("k2ld_pro")
    a("s_mov_b32 s70, 0")
    a.label(L1)
    issue_stage()
    a("s_add_u32 s70, s70, 1")
    a("s_cmp_lt_u32 s70, %d" % K2_D)
    a("s_cbranch_scc1 %s" % L1)
    a("s_waitcnt vmcnt(%d)" % (9 * (K2_D - 1)))
    a("s_barrier")
    L2 = a.newlabel("k2ld_loop")
    a("s_mov_b32 s70, 1")
    a.label(L2)
    a("s_waitcnt vmcnt(%d)" % (9 * (K2_D - 2)))
    a("s_barrier")
    issue_stage()
    a("s_add_u32 s70, s70, 1")
    a("s_cmp_lt_u32 s70, %d" % (17 - K2_D + 1))
    a("s_cbranch_scc1 %s" % L2)
    for rem in range(K2_D - 2, -1, -1):
        a("s_waitcnt vmcnt(%d)" % (9 * rem))
        a("s_barrier")
    a.label("k2_exit")
    a("s_endpgm")
    return R.hi


def kd(name, vgpr, sgpr=102):
    vg = (vgpr + 7) // 8 * 8
    return """.amdhsa_kernel %s
  .amdhsa_next_free_vgpr %d
  .amdhsa_next_free_sgpr %d
  .amdhsa_accum_offset %d
  .amdhsa_group_segment_fixed_size 0
  .amdhsa_kernarg_size 88
  .amdhsa_user_sgpr_count 2
  .amdhsa_user_sgpr_kernarg_segment_ptr 1
  .amdhsa_system_sgpr_workgroup_id_x 1
.end_amdhsa_kernel
""" % (name, vg, sgpr, vg)


def main(out):
    hdr = open(os.path.join(os.path.dirname(os.path.abspath(__file__)), "..", "cdna_kernels", NAME + ".s.ref")).read().split("\n")
    txt = []
    for ln in hdr:
        if ln.startswith("; Override") or ln.startswith("; grid=") or "@launch" in ln:
            continue
        if not ln.startswith(";"):
            break
        txt.append(ln)
    txt.append("; @launch kernel=%s grid=(256,1,1) block=(512,1,1) lds=%d" % (K1, LDS1))
    txt.append("; @launch kernel=%s grid=(256,1,1) block=(512,1,1) lds=%d" % (K2, LDS2))
    txt.append('.amdgcn_target "amdgcn-amd-amdhsa--gfx950"')
    txt.append(".text")
    a1 = Asm()
    v1 = gen_k1(a1)
    a2 = Asm()
    a2._lab = 1000
    v2 = gen_k2(a2)
    for nm, a in ((K1, a1), (K2, a2)):
        txt.append(".globl %s" % nm)
        txt.append(".p2align 8")
        txt.append(".type %s,@function" % nm)
        txt.append(a.finish())
    txt.append('.section .rodata,"a"')
    txt.append(".p2align 6")
    txt.append(kd(K1, 256))
    txt.append(".p2align 6")
    txt.append(kd(K2, 128))
    open(out, "w").write("\n".join(txt))
    print("vgpr k1 %d k2 %d" % (v1, v2))


if __name__ == "__main__":
    main(sys.argv[1] if len(sys.argv) > 1 else "cdna_kernels/%s.s" % NAME)
```
